```python
import torch

def _softmax(x, axis=-1):
    return torch.softmax(x, dim=axis)
def _gelu(x):
    return torch.nn.functional.gelu(x, approximate="tanh")
def _silu(x):
    return torch.nn.functional.silu(x)
def _sigmoid(x):
    return torch.sigmoid(x)
def _layernorm(x, axis=-1, eps=1e-5):
    m = x.mean(dim=axis, keepdim=True)
    v = x.var(dim=axis, keepdim=True, unbiased=False)
    return (x - m) / torch.sqrt(v + eps)
def _scatter_add(tgt, idx, src, axis=0):
    return tgt.clone().index_add_(axis, idx, src)
def _segment_sum(src, seg, n):
    out = torch.zeros((n,) + src.shape[1:], dtype=src.dtype)
    return out.index_add_(0, seg, src)
def _pad(x, pw):
    flat = tuple(v for pair in reversed(pw) for v in pair)
    return torch.nn.functional.pad(x, flat)

kernel_name = 'recurrent_scan__sliding_block_cached__dense_activation_gelu__decode'

def setup_inputs():

    _w = (lambda a: (lambda t: t.to(torch.bfloat16) if t.is_floating_point() else t)(torch.as_tensor(a)))
    def _A_setup():
        B, Sq, D = 8, 1, 1024
        Hq, Hkv, Sk, Dh = 32, 4, 4096, 128
        assert Hq % Hkv == 0, (Hq, Hkv)
        return {
            "x": _w((lambda *s: torch.randn(*s, dtype=torch.bfloat16) * 0.05)(B, Sq, D)),
            "k_cache": _w((lambda *s: torch.randn(*s, dtype=torch.bfloat16) * 3.2)(B, Hkv, Sk, Dh)),
            "v_cache": _w((lambda *s: torch.randn(*s, dtype=torch.bfloat16) * 3.2)(B, Hkv, Sk, Dh)),
            "wq": _w((lambda *s: torch.randn(*s, dtype=torch.bfloat16) * 3.2)(D, Hq * Dh) * (D ** -0.5)),
            "wo": _w((lambda *s: torch.randn(*s, dtype=torch.bfloat16) * 3.2)(Hq * Dh, D) * ((Hq * Dh) ** -0.5)),
        }
    _A_in = _A_setup()

    def _B_setup():
        B, S, D, F = 8, 1, 1024, 3584
        return {
            "x": _w((lambda *s: torch.randn(*s, dtype=torch.bfloat16) * 0.05)(B, S, D)),
            "w1": _w((lambda *s: torch.randn(*s, dtype=torch.bfloat16) * 3.2)(D, F) * (D ** -0.5)),
            "b1": _w((lambda *s: torch.randn(*s, dtype=torch.bfloat16) * 3.2)(F) * 0.01),
            "w2": _w((lambda *s: torch.randn(*s, dtype=torch.bfloat16) * 0.8)(F, D) * (F ** -0.5)),
            "b2": _w((lambda *s: torch.randn(*s, dtype=torch.bfloat16) * 0.8)(D) * 0.01),
        }
    _B_in = _B_setup()

    return {
        "A_x": _A_in["x"],
        "A_k_cache": _A_in["k_cache"],
        "A_v_cache": _A_in["v_cache"],
        "A_wq": _A_in["wq"],
        "A_wo": _A_in["wo"],
        "B_x": _B_in["x"],
        "B_w1": _B_in["w1"],
        "B_b1": _B_in["b1"],
        "B_w2": _B_in["w2"],
        "B_b2": _B_in["b2"],
    }

def reference(A_x, A_k_cache, A_v_cache, A_wq, A_wo, B_x, B_w1, B_b1, B_w2, B_b2):
    def _A_ref(x, k_cache, v_cache, wq, wo):
        B, Sq, D = x.shape
        Hq, Dh = 32, 128
        Hkv, Sk = k_cache.shape[1], k_cache.shape[2]
        W = min(4096, max(256, Sk // 4))
        rep = Hq // Hkv
        q = (lambda x, *d: x.permute(*d))((x @ wq).reshape(B, Sq, Hq, Dh), 0, 2, 1, 3)
        k = (lambda x, n, axis: torch.repeat_interleave(x, n, dim=axis))(k_cache[:, :, Sk - W:, :], rep, axis=1)
        v = (lambda x, n, axis: torch.repeat_interleave(x, n, dim=axis))(v_cache[:, :, Sk - W:, :], rep, axis=1)
        scores = torch.einsum("bhqd,bhkd->bhqk", q, k) * (Dh ** -0.5)
        p = _softmax(scores, axis=-1)
        o = torch.einsum("bhqk,bhkd->bhqd", p, v)
        return (lambda x, *d: x.permute(*d))(o, 0, 2, 1, 3).reshape(B, Sq, Hq * Dh) @ wo

    def _B_ref(x, w1, b1, w2, b2):
        h = torch.einsum("bsd,df->bsf", x, w1) + b1
        h = _gelu(h)
        return torch.einsum("bsf,fd->bsd", h, w2) + b2

    x = A_x
    xn = _layernorm(x, axis=-1)
    s = _A_ref(xn, A_k_cache, A_v_cache, A_wq, A_wo)
    g = _silu(_B_ref(xn, B_w1, B_b1, B_w2, B_b2))
    return x + s * g
```

```python
import re

TRANS = ('v_exp_f32', 'v_log_f32', 'v_rcp_f32', 'v_rsq_f32', 'v_sqrt_f32', 'v_sin_f32', 'v_cos_f32')


def _regs(tok):
    tok = tok.strip()
    neg = tok.lstrip('-|').rstrip('|')
    m = re.fullmatch(r'([vs])(\d+)', neg)
    if m:
        return m.group(1), {int(m.group(2))}
    m = re.fullmatch(r'([vs])\[(\d+):(\d+)\]', neg)
    if m:
        return m.group(1), set(range(int(m.group(2)), int(m.group(3)) + 1))
    if neg == 'vcc':
        return 's', {106, 107}
    if neg == 'exec':
        return 's', {126, 127}
    return None, set()


class Ins:
    def __init__(self, text):
        self.text = text
        t = text.split(';')[0].strip()
        self.is_label = t.endswith(':')
        self.op = ''
        self.vw = set(); self.vr = set(); self.sw = set(); self.sr = set()
        self.cls = 'other'
        self.dpp = False
        self.srcC = set(); self.srcAB = set()
        self.slots = 1
        if self.is_label or not t:
            self.slots = 0
            return
        parts = t.split(None, 1)
        self.op = op = parts[0]
        rest = parts[1] if len(parts) > 1 else ''
        ops = [o.strip() for o in rest.split(',')] if rest else []
        mods = ''
        if ops:
            joined = []
            done = False
            for o in ops:
                if done:
                    mods += ',' + o
                    continue
                sp = o.split(None, 1)
                joined.append(sp[0])
                if len(sp) > 1:
                    mods = sp[1]
                    done = True
            ops = joined
        self.mods = mods
        if op == 's_nop':
            self.slots = int(ops[0]) + 1
            self.cls = 'salu'
            return
        if 'quad_perm' in mods or 'row_' in mods or op.endswith('_dpp'):
            self.dpp = True

        def rd(o):
            k, r = _regs(o)
            if k == 'v': self.vr |= r
            elif k == 's': self.sr |= r

        def wr(o):
            k, r = _regs(o)
            if k == 'v': self.vw |= r
            elif k == 's': self.sw |= r
        if op.startswith('v_mfma'):
            self.cls = 'mfma'
            wr(ops[0])
            for o in ops[1:3]:
                rd(o); self.srcAB |= _regs(o)[1] if _regs(o)[0] == 'v' else set()
            rd(ops[3])
            if _regs(ops[3])[0] == 'v': self.srcC = _regs(ops[3])[1]
        elif op.startswith('v_'):
            self.cls = 'valu'
            if op.startswith('v_permlane') and 'swap' in op:
                for o in ops[:2]:
                    rd(o); wr(o)
            else:
                wr(ops[0])
                k = 1
                if '_co_' in op:
                    wr(ops[1]); k = 2
                for o in ops[k:]:
                    rd(o)
                if op.startswith(('v_fmac', 'v_mac', 'v_writelane')) or self.dpp:
                    rd(ops[0])
        elif op.startswith(('global_', 'buffer_')):
            self.cls = 'vmem'
            if '_load' in op:
                wr(ops[0])
                for o in ops[1:]: rd(o)
            else:
                for o in ops: rd(o)
                self.store_data = _regs(ops[1])[1] if op.startswith('global_') else _regs(ops[0])[1]
        elif op.startswith('ds_'):
            self.cls = 'ds'
            if op.startswith(('ds_read', 'ds_bpermute', 'ds_permute', 'ds_swizzle')):
                wr(ops[0])
                for o in ops[1:]: rd(o)
            else:
                for o in ops: rd(o)
        elif op.startswith('s_'):
            self.cls = 'salu'
            if op.startswith(('s_cmp', 's_cbranch', 's_branch', 's_waitcnt', 's_barrier', 's_endpgm', 's_sleep', 's_setprio')):
                for o in ops: rd(o)
            else:
                wr(ops[0])
                for o in ops[1:]: rd(o)


def need(p, c):
    n = 0
    if p.cls == 'valu':
        if c.cls == 'mfma' and (p.vw & c.vr): n = max(n, 2)
        if c.cls == 'valu':
            if c.dpp and (p.vw & c.vr): n = max(n, 2)
            if c.op.startswith('v_permlane') and (p.vw & c.vr): n = max(n, 2)
            if c.op.startswith(('v_readlane', 'v_readfirstlane')) and (p.vw & c.vr): n = max(n, 1)
            if p.sw & c.sr:
                n = max(n, 4 if c.op.startswith(('v_readlane', 'v_writelane', 'v_div_fmas')) else 2)
        if c.cls in ('vmem',) and (p.sw & c.sr): n = max(n, 5)
        if p.op.replace('_e32', '').replace('_e64', '') in TRANS and (p.vw & (c.vr | c.vw)): n = max(n, 1)
        if (p.sw & {126, 127}) and c.cls in ('valu', 'mfma'): n = max(n, 5)
    if p.cls == 'mfma':
        if c.cls == 'mfma':
            if p.vw & c.srcAB: n = max(n, 8)
            if p.vw & c.srcC:
                if not (p.vw == c.srcC and p.op == c.op): n = max(n, 6)
            elif p.vw & c.vw: n = max(n, 8)
        elif c.cls in ('valu', 'vmem', 'ds'):
            if p.vw & (c.vr | c.vw): n = max(n, 8)
        if c.cls == 'valu' and (p.srcC & c.vw): n = max(n, 3)
    if p.cls == 'vmem' and hasattr(p, 'store_data') and ('x4' in p.op or 'x3' in p.op):
        if p.store_data & c.vw: n = max(n, 2)
    return n


class Gen:
    def __init__(self):
        self.ins = []
        self.nvm = 0
        self.uid = 0

    def I(self, text):
        for line in text.strip().split('\n'):
            line = line.strip()
            if not line: continue
            self._emit(line)

    def _emit(self, line):
        c = Ins(line)
        if not c.is_label and c.op:
            dist = 0
            pad = 0
            for p in reversed(self.ins):
                if dist >= 12: break
                if p.op:
                    n = need(p, c)
                    if n > dist: pad = max(pad, n - dist)
                dist += p.slots
            if pad:
                self.ins.append(Ins('s_nop %d' % (pad - 1)))
        self.ins.append(c)
        if c.cls == 'vmem':
            self.nvm += 1

    def vm(self, text):
        self.I(text)
        return self.nvm - 1

    def wait_vm(self, idx):
        n = self.nvm - 1 - idx
        assert 0 <= n <= 63, n
        self.I('s_waitcnt vmcnt(%d)' % n)

    def label(self, base):
        self.uid += 1
        return 'L_%s_%d' % (base, self.uid)

    def text(self):
        out = []
        for i in self.ins:
            out.append(i.text if i.is_label else '    ' + i.text)
        return '\n'.join(out) + '\n'
```

```python
import sys, os
sys.path.insert(0, os.path.dirname(os.path.abspath(__file__)))
from asmlib import Gen

NAME = 'recurrent_scan__sliding_block_cached__dense_activation_gelu__decode'
OPT = dict(nt=' nt', spin=20000)
for a in sys.argv[2:]:
    k, v = a.split('=')
    OPT[k] = v if not v.lstrip('-').isdigit() else int(v)
NT = OPT['nt'] if OPT['nt'] != 'none' else ''

QPOFF, HPOFF, OPOFF, SPOFF, MPOFF = 0x100000, 0x200000, 0x300000, 0x500000, 0x700000
XN = 0
QL = 16512
HL = QL + 2176
OL = HL + 2176
ST = OL + 2176
PR = ST + 512
LDS = PR + 32768

vL, vC, vG = 1, 2, 3
vW, vK, vV, vD, vB, vA, vP, vS, vT = 16, 48, 64, 80, 112, 120, 136, 152, 168
vRED = 200
vGR = 204
vX = 208
NVGPR = 224
sW, sXCD, sSLOT = 3, 4, 5
sTA, sTB = 36, 37
sSELLO, sSELHI = 92, 93
sCNT = 90


def R(b, n=1):
    return 'v%d' % b if n == 1 else 'v[%d:%d]' % (b, b + n - 1)


def S2(b):
    return 's[%d:%d]' % (b, b + 1)


g = Gen()
I = g.I
retries = []


def allreduce(v, t, op, lo=True):
    if lo:
        for m in ('quad_perm:[1,0,3,2]', 'quad_perm:[2,3,0,1]', 'row_half_mirror', 'row_mirror'):
            I('%s_dpp v%d, v%d, v%d %s row_mask:0xf bank_mask:0xf' % (op, v, v, v, m))
    for p in ('16', '32'):
        I('v_mov_b32 v%d, v%d' % (t, v))
        I('v_permlane%s_swap_b32 v%d, v%d' % (p, v, t))
        I('%s v%d, v%d, v%d' % (op, v, v, t))


def sadd(dst, src, off):
    I('s_add_u32 s%d, s%d, %s' % (dst, src, off))
    I('s_addc_u32 s%d, s%d, 0' % (dst + 1, src + 1))


def unpack(lo, hi, src):
    I('v_lshlrev_b32 v%d, 16, v%d' % (lo, src))
    I('v_and_b32 v%d, 0xffff0000, v%d' % (hi, src))


def issue_poll(loads):
    last = None
    for (dst, va, sb, off) in loads:
        last = g.vm('global_load_dwordx4 %s, v%d, %s offset:%d sc1' % (R(dst, 4), va, S2(sb), off))
    return last


def mismatch(loads, t0, t1, acc):
    for n, (dst, va, sb, off) in enumerate(loads):
        I('v_xor_b32 v%d, s%d, v%d' % (t0, sTA, dst + 1))
        I('v_xor_b32 v%d, s%d, v%d' % (t1, sTB, dst + 3))
        if n == 0:
            I('v_or_b32 v%d, v%d, v%d' % (acc, t0, t1))
        else:
            I('v_or3_b32 v%d, v%d, v%d, v%d' % (acc, t0, t1, acc))
    I('v_cmp_ne_u32 vcc, 0, v%d' % acc)


def check_poll(loads, last):
    g.wait_vm(last)
    lr, lj = g.label('retry'), g.label('join')
    mismatch(loads, 4, 5, 6)
    I('s_cbranch_vccnz %s' % lr)
    I('%s:' % lj)
    retries.append((lr, lj, loads))


def emit_retries():
    for (lr, lj, loads) in retries:
        I('%s:' % lr)
        I('s_movk_i32 s%d, %d' % (sCNT, OPT['spin']))
        ll = g.label('loop')
        I('%s:' % ll)
        issue_poll(loads)
        I('s_waitcnt vmcnt(0)')
        mismatch(loads, 4, 5, 6)
        I('s_cbranch_vccz %s' % lj)
        I('s_sub_u32 s%d, s%d, 1' % (sCNT, sCNT))
        I('s_cmp_lg_u32 s%d, 0' % sCNT)
        I('s_cbranch_scc1 %s' % ll)
        I('s_branch %s' % lj)
    del retries[:]


def exec_lo32():
    I('s_mov_b32 exec_hi, 0')


def exec_all():
    I('s_mov_b64 exec, -1')


def gemv16(wbase, afrag):
    for i in range(8):
        b = vB + 4 * (i & 1)
        sel = sSELHI if i & 1 else sSELLO
        for r in range(2):
            I('v_perm_b32 v%d, v%d, v%d, s%d' % (b + r, wbase + 4 * (2 * r + 1) + (i >> 1), wbase + 4 * (2 * r) + (i >> 1), sel))
        I('v_mfma_f32_16x16x16_bf16 %s, %s, %s, 0' % (R(vD + 4 * i, 4), R(afrag, 2), R(b, 2)))


def gemv32(wbase, afrag):
    for i in range(8):
        b = vB + 4 * (i & 1)
        sel = sSELHI if i & 1 else sSELLO
        for r in range(4):
            I('v_perm_b32 v%d, v%d, v%d, s%d' % (b + r, wbase + 4 * (2 * r + 1) + (i >> 1), wbase + 4 * (2 * r) + (i >> 1), sel))
        I('v_mfma_f32_16x16x32_bf16 %s, %s, %s, 0' % (R(vD + 4 * i, 4), R(afrag, 4), R(b, 4)))


def write_partials():
    exec_lo32()
    for i in range(8):
        I('ds_write_b128 v%d, %s offset:%d' % (vX + 0, R(vD + 4 * i, 4), i * 512))
    exec_all()


def barrier():
    I('s_waitcnt lgkmcnt(0)')
    I('s_barrier')


def read_partials():
    for k in range(8):
        I('ds_read2st64_b32 %s, v%d offset0:%d offset1:%d' % (R(vT + 2 * k, 2), vRED, k * 16, k * 16 + 2))


def reduce2_store(sbase):
    read_partials()
    I('v_mov_b32 v%d, s%d' % (vGR + 1, sTA))
    I('v_mov_b32 v%d, s%d' % (vGR + 3, sTB))
    I('s_waitcnt lgkmcnt(0)')
    for h in range(2):
        I('v_add_f32 v%d, v%d, v%d' % (vT + h, vT + h, vT + 2 + h))
        I('v_add_f32 v%d, v%d, v%d' % (vT + 4 + h, vT + 4 + h, vT + 6 + h))
        I('v_add_f32 v%d, v%d, v%d' % (vT + 8 + h, vT + 8 + h, vT + 10 + h))
        I('v_add_f32 v%d, v%d, v%d' % (vT + 12 + h, vT + 12 + h, vT + 14 + h))
    for h in range(2):
        I('v_add_f32 v%d, v%d, v%d' % (vT + h, vT + h, vT + 4 + h))
        I('v_add_f32 v%d, v%d, v%d' % (vT + 8 + h, vT + 8 + h, vT + 12 + h))
    for h in range(2):
        I('v_add_f32 v%d, v%d, v%d' % (vGR + 2 * h, vT + h, vT + 8 + h))
    return lambda va: g.vm('global_store_dwordx4 v%d, %s, %s sc1' % (va, R(vGR, 4), S2(sbase)))


def rne_pair(dst, a, b):
    I('v_cvt_pk_bf16_f32 v%d, v%d, v%d' % (dst, a, b))


def prologue():
    I('s_cmp_ge_u32 s2, 256')
    I('s_cbranch_scc1 L_end')
    I('s_load_dwordx16 s[8:23], s[0:1], 0')
    I('s_load_dwordx8 s[24:31], s[0:1], 64')
    I('s_load_dwordx2 s[32:33], s[0:1], 96')
    I('v_and_b32 v%d, 63, v0' % vL)
    I('v_lshrrev_b32 v4, 6, v0')
    I('v_readfirstlane_b32 s%d, v4' % sW)
    I('v_and_b32 v%d, 15, v0' % vC)
    I('v_bfe_u32 v%d, v0, 4, 2' % vG)
    I('s_and_b32 s%d, s2, 7' % sXCD)
    I('s_lshr_b32 s%d, s2, 3' % sSLOT)
    I('s_mov_b32 s%d, 0x05040100' % sSELLO)
    I('s_mov_b32 s%d, 0x07060302' % sSELHI)
    I('s_cmp_lt_u32 s%d, 16' % sSLOT)
    I('s_cselect_b32 s6, 16, 14')
    I('s_cselect_b32 s7, 0, 16')
    I('s_cselect_b32 s86, 0x2000, 0x1c00')
    I('s_cselect_b32 s87, 0x%x, 0x%x' % (QPOFF, HPOFF))
    I('s_mul_i32 s82, s%d, s6' % sXCD)
    I('s_add_u32 s82, s82, s%d' % sSLOT)
    I('s_sub_u32 s82, s82, s7')
    I('s_and_b32 s84, s82, 3')
    I('s_lshr_b32 s85, s82, 2')
    I('s_lshl_b32 s6, s84, 3')
    I('s_add_u32 s6, s6, s%d' % sW)
    I('s_lshl_b32 s6, s6, 5')
    I('s_mul_i32 s7, s6, s86')
    I('s_lshl_b32 s82, s85, 8')
    I('s_add_u32 s7, s7, s82')
    I('s_lshl_b32 s88, s86, 3')
    I('v_mul_u32_u24 v8, s88, v%d' % vG)
    I('v_lshl_add_u32 v8, v%d, 4, v8' % vC)
    I('v_lshlrev_b32 v5, 5, v%d' % vL)
    I('s_lshl_b32 s89, s%d, 11' % sW)
    I('s_lshl_b32 s94, s%d, 2' % sXCD)
    I('s_lshr_b32 s95, s%d, 3' % sSLOT)
    I('s_add_u32 s94, s94, s95')
    I('s_and_b32 s96, s%d, 7' % sSLOT)
    I('s_lshl_b32 s97, s94, 20')
    I('s_lshl_b32 s98, s96, 15')
    I('s_add_u32 s97, s97, s98')
    I('s_lshl_b32 s98, s%d, 12' % sW)
    I('s_add_u32 s97, s97, s98')
    I('s_add_u32 s97, s97, 0xc0000')
    I('v_lshlrev_b32 v9, 8, v%d' % vC)
    I('v_lshl_add_u32 v9, v%d, 4, v9' % vG)
    I('v_lshlrev_b32 v10, 10, v%d' % vG)
    I('v_lshl_add_u32 v10, v%d, 4, v10' % vC)
    I('s_cmp_lt_u32 s%d, 16' % sSLOT)
    I('s_waitcnt lgkmcnt(0)')
    I('s_load_dwordx2 s[34:35], s[32:33], 0')
    I('s_cselect_b32 s40, s14, s20')
    I('s_cselect_b32 s41, s15, s21')
    I('s_cmp_lt_u32 s%d, 4' % sSLOT)
    I('s_cbranch_scc1 L_v10')
    I('s_cmp_ge_u32 s%d, 30' % sSLOT)
    I('s_cbranch_scc1 L_v01')


def body(hasP1, hasW2):
    g.nvm = 0
    if hasP1:
        sadd(82, 8, 's89')
        g.vm('global_load_dwordx4 %s, v5, s[82:83]' % R(vD, 4))
        idx_x = g.vm('global_load_dwordx4 %s, v5, s[82:83] offset:16' % R(vD + 4, 4))
        sadd(40, 40, 's7')
        for t in range(8):
            if t:
                sadd(40, 40, 's86')
            idx_p1 = g.vm('global_load_dwordx4 %s, v8, s[40:41]%s' % (R(vW + 4 * t, 4), NT))
    sadd(56, 10, 's97')
    sadd(58, 12, 's97')
    for s in range(4):
        idx_k = g.vm('global_load_dwordx4 %s, v9, s[56:57] offset:%d%s' % (R(vK + 4 * s, 4), s * 64, NT))
    for t in range(4):
        idx_v = g.vm('global_load_dwordx4 %s, v10, s[58:59] offset:%d%s' % (R(vV + 4 * t, 4), t * 256, NT))
    I('s_lshl_b32 s6, s%d, 12' % sW)
    I('s_add_u32 s6, s6, %d' % PR)
    I('v_lshl_add_u32 v%d, v%d, 4, s6' % (vX + 0, vL))
    I('s_lshr_b32 s98, s%d, 1' % sW)
    I('s_and_b32 s99, s%d, 1' % sW)
    I('s_lshl_b32 s6, s98, 10')
    I('s_lshl_b32 s7, s99, 8')
    I('s_add_u32 s6, s6, s7')
    I('s_add_u32 s6, s6, %d' % PR)
    I('v_lshl_add_u32 v%d, v%d, 2, s6' % (vRED, vL))
    I('v_and_b32 v%d, 3, v%d' % (vX + 2, vL))
    I('s_lshl_b32 s6, s99, 2')
    I('v_add_u32 v%d, s6, v%d' % (vX + 2, vX + 2))
    I('v_lshrrev_b32 v%d, 2, v%d' % (vX + 3, vL))
    I('s_lshl_b32 s6, s98, 8')
    I('v_lshl_add_u32 v%d, v%d, 4, s6' % (vX + 4, vX + 3))
    I('v_lshl_add_u32 v%d, v%d, 17, v%d' % (vX + 1, vX + 2, vX + 4))
    I('v_lshl_add_u32 v%d, v%d, 13, v%d' % (vX + 5, vX + 2, vX + 4))
    I('v_lshlrev_b32 v%d, 4, v%d' % (vX + 6, vL))
    I('v_and_b32 v%d, 7, v%d' % (vX + 7, vL))
    I('v_mul_u32_u24 v%d, 272, v%d' % (vX + 8, vX + 7))
    I('s_lshl_b32 s6, s%d, 15' % sW)
    I('s_add_u32 s6, s6, 4096')
    I('v_lshlrev_b32 v11, 13, v%d' % vG)
    I('v_lshl_add_u32 v11, v%d, 4, v11' % vC)
    I('v_add_u32 v11, s6, v11')
    I('s_lshl_b32 s6, s94, 18')
    I('s_lshl_b32 s7, s96, 8')
    I('s_add_u32 s6, s6, s7')
    sadd(60, 16, 's6')
    I('s_lshl_b32 s6, s94, 16')
    I('s_lshl_b32 s7, s96, 10')
    I('s_add_u32 s6, s6, s7')
    I('s_add_u32 s6, s6, 0x%x' % SPOFF)
    sadd(74, 32, 's6')
    I('s_lshl_b32 s6, s94, 3')
    I('s_add_u32 s6, s6, s%d' % sW)
    I('s_lshl_b32 s6, s6, 12')
    I('s_add_u32 s6, s6, 0x%x' % QPOFF)
    sadd(66, 32, 's6')
    I('s_lshl_b32 s6, s94, 6')
    I('s_add_u32 s6, s6, s96')
    I('s_mul_i32 s6, s6, 640')
    I('s_add_u32 s6, s6, 0x%x' % OPOFF)
    sadd(68, 32, 's6')
    I('s_lshl_b32 s6, s%d, 5' % sW)
    I('s_add_u32 s6, s6, s94')
    I('s_mul_i32 s6, s6, 5120')
    I('s_add_u32 s6, s6, 0x%x' % OPOFF)
    sadd(70, 32, 's6')
    if hasW2:
        I('s_mul_i32 s6, s%d, 28' % sXCD)
        I('s_add_u32 s6, s6, s%d' % sSLOT)
        I('s_sub_u32 s6, s6, 4')
        I('s_lshr_b32 s100, s6, 3')
        I('s_and_b32 s101, s6, 7')
        I('s_lshl_b32 s6, s100, 18')
        I('s_lshl_b32 s7, s101, 8')
        I('s_add_u32 s6, s6, s7')
        sadd(62, 24, 's6')
        I('s_lshl_b32 s6, s100, 16')
        I('s_lshl_b32 s7, s101, 10')
        I('s_add_u32 s6, s6, s7')
        I('s_add_u32 s6, s6, 0x%x' % MPOFF)
        sadd(76, 32, 's6')
        I('s_lshl_b32 s6, s%d, 5' % sW)
        I('s_add_u32 s6, s6, s100')
        I('s_lshl_b32 s6, s6, 12')
        I('s_add_u32 s6, s6, 0x%x' % HPOFF)
        sadd(72, 32, 's6')
        I('s_lshl_b32 s6, s100, 8')
        sadd(42, 22, 's6')
    I('s_mul_i32 s6, s%d, 272' % sW)
    I('v_lshlrev_b32 v%d, 4, v%d' % (vX + 9, vC))
    I('v_lshl_add_u32 v%d, v%d, 2, v%d' % (vX + 9, vG, vX + 9))
    I('v_add_u32 v%d, s6, v%d' % (vX + 10, vX + 9))
    I('s_waitcnt lgkmcnt(0)')
    I('s_add_u32 s%d, s34, 1' % sTA)
    I('s_add_u32 s%d, s35, 0x9e3779b9' % sTB)

    if hasP1:
        I('s_lshl_b32 s6, s85, 2')
        I('s_add_u32 s6, s6, s84')
        I('s_lshl_b32 s6, s6, 10')
        I('s_add_u32 s6, s6, s87')
        sadd(64, 32, 's6')
        g.wait_vm(idx_x)
        f = vD + 8
        for i in range(8):
            unpack(f + 2 * i, f + 2 * i + 1, vD + i)
        a = vD + 24
        for i in range(4):
            I('v_add_f32 v%d, v%d, v%d' % (a + i, f + i, f + 4 + i))
        for i in range(4):
            I('v_add_f32 v%d, v%d, v%d' % (vT + i, f + 8 + i, f + 12 + i))
        for i in range(4):
            I('v_add_f32 v%d, v%d, v%d' % (a + i, a + i, vT + i))
        I('v_add_f32 v%d, v%d, v%d' % (a, a, a + 1))
        I('v_add_f32 v%d, v%d, v%d' % (a + 2, a + 2, a + 3))
        I('v_add_f32 v%d, v%d, v%d' % (a, a, a + 2))
        allreduce(a, a + 1, 'v_add_f32')
        I('v_mul_f32 v%d, 0x3a800000, v%d' % (a, a))
        for i in range(16):
            I('v_sub_f32 v%d, v%d, v%d' % (vT + i, f + i, a))
        I('v_mul_f32 v%d, v%d, v%d' % (a + 2, vT, vT))
        I('v_mul_f32 v%d, v%d, v%d' % (a + 3, vT + 1, vT + 1))
        for i in range(2, 16):
            I('v_fmac_f32 v%d, v%d, v%d' % (a + 2 + (i & 1), vT + i, vT + i))
        I('v_add_f32 v%d, v%d, v%d' % (a + 2, a + 2, a + 3))
        allreduce(a + 2, a + 1, 'v_add_f32')
        I('v_mul_f32 v%d, 0x3a800000, v%d' % (a + 2, a + 2))
        rne_pair(a + 1, a, a + 2)
        unpack(a, a + 2, a + 1)
        I('v_add_f32 v%d, 0x3727c5ac, v%d' % (a + 2, a + 2))
        rne_pair(a + 2, a + 2, a + 2)
        I('v_lshlrev_b32 v%d, 16, v%d' % (a + 2, a + 2))
        I('v_sqrt_f32 v%d, v%d' % (a + 2, a + 2))
        rne_pair(a + 2, a + 2, a + 2)
        I('v_lshlrev_b32 v%d, 16, v%d' % (a + 2, a + 2))
        I('v_rcp_f32 v%d, v%d' % (a + 3, a + 2))
        for i in range(16):
            I('v_sub_f32 v%d, v%d, v%d' % (f + i, f + i, a))
        for i in range(8):
            rne_pair(vD + i, f + 2 * i, f + 2 * i + 1)
        for i in range(8):
            unpack(f + 2 * i, f + 2 * i + 1, vD + i)
        for i in range(16):
            I('v_mul_f32 v%d, v%d, v%d' % (vT + i, f + i, a + 3))
        for i in range(16):
            I('v_fma_f32 v%d, -v%d, v%d, v%d' % (f + i, vT + i, a + 2, f + i))
        for i in range(16):
            I('v_fmac_f32 v%d, v%d, v%d' % (vT + i, f + i, a + 3))
        for i in range(8):
            rne_pair(vD + i, vT + 2 * i, vT + 2 * i + 1)
        I('s_mul_i32 s6, s%d, 2064' % sW)
        I('v_add_u32 v4, s6, v5')
        I('ds_write_b128 v4, %s offset:%d' % (R(vD, 4), XN))
        I('ds_write_b128 v4, %s offset:%d' % (R(vD + 4, 4), XN + 16))
        I('s_lshl_b32 s6, s84, 3')
        I('s_add_u32 s6, s6, s%d' % sW)
        I('s_lshl_b32 s6, s6, 6')
        I('v_mul_u32_u24 v4, 2064, v%d' % (vX + 7))
        I('v_lshl_add_u32 v4, v%d, 4, v4' % vG)
        I('v_add_u32 v4, s6, v4')
        barrier()
        I('ds_read_b128 %s, v4 offset:%d' % (R(vA, 4), XN))
        g.wait_vm(idx_p1)
        I('s_waitcnt lgkmcnt(0)')
        gemv32(vW, vA)
        write_partials()
        barrier()
        st = reduce2_store(64)
        st(vX + 1)

    g.wait_vm(idx_k)
    pq = [(vP + 4 * k, vX + 6, 66, k * 1024) for k in range(4)]
    last_pq = issue_poll(pq)
    if hasW2:
        for t in range(4):
            idx_w2 = g.vm('global_load_dwordx4 %s, v11, s[62:63] offset:%d%s' % (R(vW + 4 * t, 4), (t - 2) * 2048, NT))
    check_poll(pq, last_pq)
    for h in (0, 2):
        I('v_add_f32 v%d, v%d, v%d' % (vP + h, vP + h, vP + 4 + h))
        I('v_add_f32 v%d, v%d, v%d' % (vP + 8 + h, vP + 8 + h, vP + 12 + h))
    for h in (0, 2):
        I('v_add_f32 v%d, v%d, v%d' % (vP + h, vP + h, vP + 8 + h))
    rne_pair(4, vP, vP + 2)
    I('ds_write_b32 v%d, v4 offset:%d' % (vX + 10, QL))
    if hasW2:
        ph = [(vP + 4 * k, vX + 6, 72, k * 1024) for k in range(4)]
        last_ph = issue_poll(ph)
        idx_b1 = g.vm('global_load_dword v%d, v%d, s[42:43]' % (vX + 11, vX + 9))
    for t in range(4):
        idx_wo = g.vm('global_load_dwordx4 %s, v11, s[60:61] offset:%d%s' % (R(vW + 16 + 4 * t, 4), (t - 2) * 2048, NT))
    I('v_lshl_add_u32 v4, v%d, 4, v%d' % (vG, vX + 8))
    barrier()
    for s in range(4):
        I('ds_read_b128 %s, v4 offset:%d' % (R(vA + 4 * s, 4), QL + s * 64))
    for s in range(4):
        I('s_waitcnt lgkmcnt(%d)' % (3 - s))
        I('v_mfma_f32_16x16x32_bf16 %s, %s, %s, %s' % (R(vD, 4), R(vK + 4 * s, 4), R(vA + 4 * s, 4), '0' if s == 0 else R(vD, 4)))
    rne_pair(vT, vD, vD + 1)
    rne_pair(vT + 1, vD + 2, vD + 3)
    unpack(vT + 2, vT + 3, vT)
    unpack(vT + 4, vT + 5, vT + 1)
    for i in range(4):
        I('v_mul_f32 v%d, 0x3db504f3, v%d' % (vT + 2 + i, vT + 2 + i))
    rne_pair(vT, vT + 2, vT + 3)
    rne_pair(vT + 1, vT + 4, vT + 5)
    unpack(vT + 2, vT + 3, vT)
    unpack(vT + 4, vT + 5, vT + 1)
    for i in range(4):
        I('v_mul_f32 v%d, 0x3fb8aa3b, v%d' % (vT + 2 + i, vT + 2 + i))
    I('v_max_f32 v%d, v%d, v%d' % (vT + 6, vT + 2, vT + 3))
    I('v_max3_f32 v%d, v%d, v%d, v%d' % (vT + 6, vT + 4, vT + 5, vT + 6))
    allreduce(vT + 6, vT + 8, 'v_max_f32', lo=False)
    for i in range(4):
        I('v_sub_f32 v%d, v%d, v%d' % (vT + 2 + i, vT + 2 + i, vT + 6))
    for i in range(4):
        I('v_exp_f32 v%d, v%d' % (vT + 2 + i, vT + 2 + i))
    rne_pair(vA, vT + 2, vT + 3)
    rne_pair(vA + 1, vT + 4, vT + 5)
    I('v_add_f32 v%d, v%d, v%d' % (vT + 7, vT + 2, vT + 3))
    I('v_add_f32 v%d, v%d, v%d' % (vT + 8, vT + 4, vT + 5))
    I('v_add_f32 v%d, v%d, v%d' % (vT + 7, vT + 7, vT + 8))
    gemv16(vV, vA)
    allreduce(vT + 7, vT + 8, 'v_add_f32', lo=False)
    I('s_lshl_b32 s6, s%d, 6' % sW)
    I('v_lshl_add_u32 v4, v%d, 3, s6' % vC)
    I('s_mov_b64 exec, 0xff')
    I('ds_write_b64 v4, %s offset:%d' % (R(vT + 6, 2), ST))
    exec_all()
    write_partials()
    I('v_lshlrev_b32 v4, 3, v%d' % (vX + 2))
    I('v_add_u32 v4, %d, v4' % ST)
    barrier()
    for k in range(4):
        I('ds_read2_b64 %s, v4 offset0:%d offset1:%d' % (R(vS + 4 * k, 4), 16 * k, 16 * k + 8))
    read_partials()
    I('s_waitcnt lgkmcnt(8)')
    I('v_max3_f32 v5, v%d, v%d, v%d' % (vS, vS + 2, vS + 4))
    I('v_max3_f32 v5, v%d, v%d, v5' % (vS + 6, vS + 8))
    I('v_max3_f32 v5, v%d, v%d, v5' % (vS + 10, vS + 12))
    I('v_max_f32 v5, v%d, v5' % (vS + 14))
    for k in range(8):
        I('v_sub_f32 v%d, v%d, v5' % (vS + 2 * k, vS + 2 * k))
    for k in range(8):
        I('v_exp_f32 v%d, v%d' % (vS + 2 * k, vS + 2 * k))
    I('v_mul_f32 v6, v%d, v%d' % (vS, vS + 1))
    for k in range(1, 8):
        I('v_fmac_f32 v6, v%d, v%d' % (vS + 2 * k, vS + 2 * k + 1))
    I('v_rcp_f32 v7, v6')
    I('v_log_f32 v6, v6')
    I('s_waitcnt lgkmcnt(0)')
    for h in range(2):
        I('v_mul_f32 v%d, v%d, v%d' % (12 + h, vS, vT + h))
    for k in range(1, 8):
        for h in range(2):
            I('v_fmac_f32 v%d, v%d, v%d' % (12 + h, vS + 2 * k, vT + 2 * k + h))
    for h in range(2):
        I('v_mul_f32 v%d, v%d, v7' % (12 + h, 12 + h))
    rne_pair(vGR, 12, 13)
    I('s_bitcmp1_b32 s98, 0')
    I('s_cselect_b32 s6, s%d, s%d' % (sTB, sTA))
    I('v_mov_b32 v%d, s6' % (vGR + 1))
    I('v_mul_u32_u24 v4, 5120, v%d' % (vX + 2))
    I('s_lshl_b32 s6, s98, 3')
    I('v_lshl_add_u32 v14, v%d, 5, s6' % (vX + 3))
    I('v_add_u32 v14, v4, v14')
    g.vm('global_store_dwordx2 v14, %s, s[68:69] sc1' % R(vGR, 2))
    I('v_add_f32 v%d, v5, v6' % (vT + 16))
    I('v_mov_b32 v%d, s%d' % (vT + 17, sTA))
    I('v_mov_b32 v%d, v%d' % (vT + 18, vT + 16))
    I('v_mov_b32 v%d, s%d' % (vT + 19, sTB))
    I('s_cmp_lt_u32 s%d, 2' % sW)
    I('s_cselect_b32 s6, 15, 1')
    I('s_mov_b32 exec_lo, s6')
    I('s_mov_b32 exec_hi, 0')
    g.vm('global_store_dwordx4 v4, %s, s[68:69] offset:512 sc1' % R(vT + 16, 4))
    exec_all()

    if hasW2:
        check_poll(ph, idx_b1)
        for h in (0, 2):
            I('v_add_f32 v%d, v%d, v%d' % (vP + h, vP + h, vP + 4 + h))
            I('v_add_f32 v%d, v%d, v%d' % (vP + 8 + h, vP + 8 + h, vP + 12 + h))
        for h in (0, 2):
            I('v_add_f32 v%d, v%d, v%d' % (vP + h, vP + h, vP + 8 + h))
        rne_pair(4, vP, vP + 2)
        unpack(vT, vT + 1, 4)
        unpack(vT + 2, vT + 3, vX + 11)
        for h in range(2):
            I('v_add_f32 v%d, v%d, v%d' % (vT + h, vT + h, vT + 2 + h))
        rne_pair(4, vT, vT + 1)
        unpack(vT, vT + 1, 4)
        for h in range(2):
            I('v_mul_f32 v%d, v%d, v%d' % (vT + 2 + h, vT + h, vT + h))
        for h in range(2):
            I('v_mul_f32 v%d, 0x3d372713, v%d' % (vT + 2 + h, vT + 2 + h))
        for h in range(2):
            I('v_fma_f32 v%d, v%d, v%d, v%d' % (vT + 2 + h, vT + 2 + h, vT + h, vT + h))
        for h in range(2):
            I('v_mul_f32 v%d, 0xc0135761, v%d' % (vT + 2 + h, vT + 2 + h))
        for h in range(2):
            I('v_exp_f32 v%d, v%d' % (vT + 2 + h, vT + 2 + h))
        for h in range(2):
            I('v_add_f32 v%d, 1.0, v%d' % (vT + 2 + h, vT + 2 + h))
        for h in range(2):
            I('v_rcp_f32 v%d, v%d' % (vT + 2 + h, vT + 2 + h))
        for h in range(2):
            I('v_mul_f32 v%d, v%d, v%d' % (vT + h, vT + h, vT + 2 + h))
        rne_pair(4, vT, vT + 1)
        I('ds_write_b32 v%d, v4 offset:%d' % (vX + 10, HL))
    I('s_lshl_b32 s6, s%d, 5' % sW)
    I('v_lshl_add_u32 v%d, v%d, 3, v%d' % (vX + 12, vG, vX + 8))
    I('v_add_u32 v%d, s6, v%d' % (vX + 12, vX + 12))
    I('v_lshrrev_b32 v4, 5, v%d' % vL)
    I('v_mul_u32_u24 v%d, 640, v4' % (vX + 13))
    I('v_and_b32 v4, 31, v%d' % vL)
    I('v_lshl_add_u32 v%d, v4, 4, v%d' % (vX + 14, vX + 13))
    I('v_add_u32 v%d, 512, v%d' % (vX + 13, vX + 13))
    if hasW2:
        barrier()
        I('ds_read_b64 %s, v%d offset:%d' % (R(vA, 2), vX + 12, HL))
        I('s_waitcnt lgkmcnt(0)')
        gemv16(vW, vA)
        write_partials()
        barrier()
        st = reduce2_store(76)
        st(vX + 5)
    po = [(vP + 4 * t, vX + 14, 70, t * 1280) for t in range(4)]
    po += [(vS + 4 * t, vX + 13, 70, t * 1280) for t in range(4)]
    last_po = issue_poll(po)
    check_poll(po, last_po)
    I('v_max_f32 v5, v%d, v%d' % (vS, vS + 4))
    I('v_max3_f32 v5, v%d, v%d, v5' % (vS + 8, vS + 12))
    I('v_mov_b32 v6, v5')
    I('v_permlane32_swap_b32 v5, v6')
    I('v_max_f32 v5, v5, v6')
    for t in range(4):
        I('v_sub_f32 v%d, v%d, v5' % (vS + 4 * t, vS + 4 * t))
    for t in range(4):
        I('v_exp_f32 v%d, v%d' % (vS + 4 * t, vS + 4 * t))
    for t in range(4):
        unpack(vT + 4 * t, vT + 4 * t + 1, vP + 4 * t)
        unpack(vT + 4 * t + 2, vT + 4 * t + 3, vP + 4 * t + 2)
    I('v_add_f32 v%d, v%d, v%d' % (vT + 20, vS, vS + 4))
    I('v_add_f32 v%d, v%d, v%d' % (vT + 21, vS + 8, vS + 12))
    I('v_add_f32 v%d, v%d, v%d' % (vT + 20, vT + 20, vT + 21))
    for d in range(4):
        I('v_mul_f32 v%d, v%d, v%d' % (vT + 16 + d, vS, vT + d))
    for t in range(1, 4):
        for d in range(4):
            I('v_fmac_f32 v%d, v%d, v%d' % (vT + 16 + d, vS + 4 * t, vT + 4 * t + d))
    for d in range(5):
        I('v_mov_b32 v%d, v%d' % (vT + d, vT + 16 + d))
    for d in range(5):
        I('v_permlane32_swap_b32 v%d, v%d' % (vT + d, vT + 16 + d))
    for d in range(5):
        I('v_add_f32 v%d, v%d, v%d' % (vT + d, vT + d, vT + 16 + d))
    I('v_rcp_f32 v%d, v%d' % (vT + 4, vT + 4))
    for d in range(4):
        I('v_mul_f32 v%d, v%d, v%d' % (vT + d, vT + d, vT + 4))
    rne_pair(vT + 6, vT, vT + 1)
    rne_pair(vT + 7, vT + 2, vT + 3)
    I('s_mul_i32 s6, s%d, 272' % sW)
    I('v_lshl_add_u32 v4, v%d, 3, s6' % vL)
    exec_lo32()
    I('ds_write_b64 v4, %s offset:%d' % (R(vT + 6, 2), OL))
    exec_all()
    barrier()
    I('ds_read_b64 %s, v%d offset:%d' % (R(vA, 2), vX + 12, OL))
    I('s_waitcnt lgkmcnt(0)')
    gemv16(vW + 16, vA)
    write_partials()
    barrier()
    st = reduce2_store(74)
    st(vX + 5)
    I('s_cmp_lg_u32 s%d, 0' % sW)
    I('s_cbranch_scc1 L_end')
    I('s_lshl_b32 s6, s%d, 13' % sXCD)
    I('s_lshl_b32 s7, s%d, 8' % sSLOT)
    I('s_add_u32 s6, s6, s7')
    I('v_lshlrev_b32 v8, 16, v%d' % vG)
    I('v_lshl_add_u32 v8, v%d, 4, v8' % vC)
    I('v_add_u32 v8, s6, v8')
    for t in range(1, 8):
        I('v_add_u32 v%d, 0x%x, v8' % (8 + t, t * 0x40000))
    sadd(78, 32, '0x%x' % SPOFF)
    sadd(80, 32, '0x%x' % MPOFF)
    I('s_lshr_b32 s6, s%d, 2' % sSLOT)
    I('s_lshl_b32 s6, s6, 8')
    I('s_and_b32 s7, s%d, 3' % sSLOT)
    I('s_lshl_b32 s7, s7, 2')
    I('s_add_u32 s6, s6, s7')
    I('v_lshl_add_u32 v%d, v%d, 4, s6' % (vX, vC))
    I('s_lshl_b32 s6, s%d, 11' % sXCD)
    I('v_add_u32 v%d, s6, v%d' % (vX + 1, vX))
    g.vm('global_load_dword v%d, v%d, s[26:27]' % (vX + 2, vX))
    g.vm('global_load_dword v%d, v%d, s[8:9]' % (vX + 3, vX + 1))
    pf = [(vW + 4 * t, 8 + t, 80, 0) for t in range(7)] + [(vW + 28 + 4 * t, 8 + t, 78, 0) for t in range(8)]
    last_pf = issue_poll(pf)
    check_poll(pf, last_pf)
    for h in (0, 2):
        for (b0, n) in ((vW, 7), (vW + 28, 8)):
            for t in range(1, n):
                I('v_add_f32 v%d, v%d, v%d' % (b0 + h, b0 + h, b0 + 4 * t + h))
    for r in (vW, vW + 2, vW + 28, vW + 30):
        allreduce(r, r + 1, 'v_add_f32', lo=False)
    rne_pair(4, vW, vW + 2)
    rne_pair(5, vW + 28, vW + 30)
    unpack(vT, vT + 1, 4)
    unpack(vT + 2, vT + 3, vX + 2)
    for h in range(2):
        I('v_add_f32 v%d, v%d, v%d' % (vT + h, vT + h, vT + 2 + h))
    rne_pair(4, vT, vT + 1)
    unpack(vT, vT + 1, 4)
    for h in range(2):
        I('v_mul_f32 v%d, 0xbfb8aa3b, v%d' % (vT + 2 + h, vT + h))
    for h in range(2):
        I('v_exp_f32 v%d, v%d' % (vT + 2 + h, vT + 2 + h))
    for h in range(2):
        I('v_add_f32 v%d, 1.0, v%d' % (vT + 2 + h, vT + 2 + h))
    for h in range(2):
        I('v_rcp_f32 v%d, v%d' % (vT + 2 + h, vT + 2 + h))
    for h in range(2):
        I('v_mul_f32 v%d, v%d, v%d' % (vT + h, vT + h, vT + 2 + h))
    rne_pair(4, vT, vT + 1)
    unpack(vT, vT + 1, 4)
    unpack(vT + 2, vT + 3, 5)
    for h in range(2):
        I('v_mul_f32 v%d, v%d, v%d' % (vT + h, vT + h, vT + 2 + h))
    rne_pair(4, vT, vT + 1)
    unpack(vT, vT + 1, 4)
    unpack(vT + 2, vT + 3, vX + 3)
    for h in range(2):
        I('v_add_f32 v%d, v%d, v%d' % (vT + h, vT + h, vT + 2 + h))
    rne_pair(4, vT, vT + 1)
    I('s_mov_b64 exec, 0xffff')
    g.vm('global_store_dword v%d, v4, s[28:29]' % (vX + 1))
    if not hasW2:
        I('s_cmp_lg_u32 s2, 0')
        I('s_cbranch_scc1 L_end')
        I('s_mov_b64 exec, 1')
        I('v_mov_b32 v4, s%d' % sTA)
        I('v_mov_b32 v5, s%d' % sTB)
        I('v_mov_b32 v6, 0')
        g.vm('global_store_dwordx2 v6, v[4:5], s[32:33] sc1')
    I('s_endpgm')
    emit_retries()


prologue()
body(True, True)
I('L_v10:')
body(True, False)
I('L_v01:')
body(False, True)
I('L_end:')

HERE = os.path.dirname(os.path.abspath(__file__))
ref = open(os.path.join(HERE, 'cdna_kernels', NAME + '.s.ref')).read()
head = ref[:ref.index('; @launch')]
out = head + '; @launch grid=(256,1,1) block=(512,1,1) lds=%d\n' % LDS
out += """.amdgcn_target "amdgcn-amd-amdhsa--gfx950"
.text
.globl %s_kernel
.p2align 8
.type %s_kernel,@function
%s_kernel:
""" % (NAME, NAME, NAME)
out += g.text()
out += """s_endpgm
.section .rodata,"a"
.p2align 6
.amdhsa_kernel %s_kernel
  .amdhsa_next_free_vgpr %d
  .amdhsa_next_free_sgpr 102
  .amdhsa_accum_offset %d
  .amdhsa_group_segment_fixed_size 0
  .amdhsa_kernarg_size 104
  .amdhsa_user_sgpr_count 2
  .amdhsa_user_sgpr_kernarg_segment_ptr 1
  .amdhsa_system_sgpr_workgroup_id_x 1
.end_amdhsa_kernel
""" % (NAME, NVGPR, NVGPR)
dst = sys.argv[1] if len(sys.argv) > 1 else os.path.join(HERE, 'cdna_kernels', NAME + '.s')
open(dst, 'w').write(out)
print('wrote', dst, len(g.ins), 'lines')
```
